```python
import torch

def _softmax(x, axis=-1):
    return torch.softmax(x, dim=axis)
def _gelu(x):
    return torch.nn.functional.gelu(x, approximate="tanh")
def _silu(x):
    return torch.nn.functional.silu(x)
def _sigmoid(x):
    return torch.sigmoid(x)
def _layernorm(x, axis=-1, eps=1e-5):
    m = x.mean(dim=axis, keepdim=True)
    v = x.var(dim=axis, keepdim=True, unbiased=False)
    return (x - m) / torch.sqrt(v + eps)
def _scatter_add(tgt, idx, src, axis=0):
    return tgt.clone().index_add_(axis, idx, src)
def _segment_sum(src, seg, n):
    out = torch.zeros((n,) + src.shape[1:], dtype=src.dtype)
    return out.index_add_(0, seg, src)
def _pad(x, pw):
    flat = tuple(v for pair in reversed(pw) for v in pair)
    return torch.nn.functional.pad(x, flat)

kernel_name = 'sequential_preLN__sliding_block_cached__dense_activation_squared_relu__decode'

def setup_inputs():

    _w = (lambda a: (lambda t: t.to(torch.bfloat16) if t.is_floating_point() else t)(torch.as_tensor(a)))
    def _A_setup():
        B, Sq, D = 1, 1, 640
        Hq, Hkv, Sk, Dh = 32, 32, 32768, 192
        assert Hq % Hkv == 0, (Hq, Hkv)
        return {
            "x": _w((lambda *s: torch.randn(*s, dtype=torch.bfloat16) * 0.05)(B, Sq, D)),
            "k_cache": _w((lambda *s: torch.randn(*s, dtype=torch.bfloat16) * 3.2)(B, Hkv, Sk, Dh)),
            "v_cache": _w((lambda *s: torch.randn(*s, dtype=torch.bfloat16) * 0.4)(B, Hkv, Sk, Dh)),
            "wq": _w((lambda *s: torch.randn(*s, dtype=torch.bfloat16) * 3.2)(D, Hq * Dh) * (D ** -0.5)),
            "wo": _w((lambda *s: torch.randn(*s, dtype=torch.bfloat16) * 0.4)(Hq * Dh, D) * ((Hq * Dh) ** -0.5)),
        }
    _A_in = _A_setup()

    def _B_setup():
        B, S, D, F = 1, 1, 640, 1536
        return {
            "x": _w((lambda *s: torch.randn(*s, dtype=torch.bfloat16) * 0.05)(B, S, D)),
            "w1": _w((lambda *s: torch.randn(*s, dtype=torch.bfloat16) * 0.05)(D, F)),
            "b1": _w((lambda *s: torch.randn(*s, dtype=torch.bfloat16) * 0.8)(F)),
            "w2": _w((lambda *s: torch.randn(*s, dtype=torch.bfloat16) * 0.05)(F, D)),
            "b2": _w((lambda *s: torch.randn(*s, dtype=torch.bfloat16) * 3.2)(D)),
        }
    _B_in = _B_setup()

    return {
        "A_x": _A_in["x"],
        "A_k_cache": _A_in["k_cache"],
        "A_v_cache": _A_in["v_cache"],
        "A_wq": _A_in["wq"],
        "A_wo": _A_in["wo"],
        "B_x": _B_in["x"],
        "B_w1": _B_in["w1"],
        "B_b1": _B_in["b1"],
        "B_w2": _B_in["w2"],
        "B_b2": _B_in["b2"],
    }

def reference(A_x, A_k_cache, A_v_cache, A_wq, A_wo, B_x, B_w1, B_b1, B_w2, B_b2):
    def _A_ref(x, k_cache, v_cache, wq, wo):
        B, Sq, D = x.shape
        Hq, Dh = 32, 192
        Hkv, Sk = k_cache.shape[1], k_cache.shape[2]
        W = min(4096, max(256, Sk // 4))
        rep = Hq // Hkv
        q = (lambda x, *d: x.permute(*d))((x @ wq).reshape(B, Sq, Hq, Dh), 0, 2, 1, 3)
        k = (lambda x, n, axis: torch.repeat_interleave(x, n, dim=axis))(k_cache[:, :, Sk - W:, :], rep, axis=1)
        v = (lambda x, n, axis: torch.repeat_interleave(x, n, dim=axis))(v_cache[:, :, Sk - W:, :], rep, axis=1)
        scores = torch.einsum("bhqd,bhkd->bhqk", q, k) * (Dh ** -0.5)
        p = _softmax(scores, axis=-1)
        o = torch.einsum("bhqk,bhkd->bhqd", p, v)
        return (lambda x, *d: x.permute(*d))(o, 0, 2, 1, 3).reshape(B, Sq, Hq * Dh) @ wo

    def _B_ref(x, w1, b1, w2, b2):
        h = torch.einsum("bsd,df->bsf", x, w1) + b1
        zero = torch.zeros_like(h)
        r = torch.where(h > zero, h, zero)
        h = r * r
        out = torch.einsum("bsf,fd->bsd", h, w2) + b2
        return out

    x = A_x
    h = x + _A_ref(_layernorm(x, axis=-1), A_k_cache, A_v_cache, A_wq, A_wo)
    h2 = h + _B_ref(_layernorm(h, axis=-1), B_w1, B_b1, B_w2, B_b2)
    return h2
```

```python
import re

TRANS = ("v_exp_f32", "v_log_f32", "v_rcp_f32", "v_rsq_f32", "v_sqrt_f32", "v_sin_f32", "v_cos_f32")

def regs(tok):
    tok = tok.strip().lstrip("-").replace("|", "")
    m = re.fullmatch(r"([vs])(\d+)", tok)
    if m: return {m.group(1) + m.group(2)}
    m = re.fullmatch(r"([vs])\[(\d+):(\d+)\]", tok)
    if m: return {m.group(1) + str(i) for i in range(int(m.group(2)), int(m.group(3)) + 1)}
    if tok in ("vcc", "vcc_lo", "vcc_hi"): return {"vcc"}
    if tok in ("exec", "exec_lo", "exec_hi"): return {"exec"}
    if tok == "m0": return {"m0"}
    return set()

class Ins:
    def __init__(self, text):
        self.text = text
        parts = text.split(None, 1)
        self.op = parts[0]
        rest = parts[1] if len(parts) > 1 else ""
        ops = [o.strip() for o in re.split(r",(?![^\[]*\])", rest)] if rest else []
        if ops:
            last = ops[-1].split()
            ops[-1] = last[0] if last else ""
            self.mods = " ".join(last[1:])
        else:
            self.mods = ""
        self.ops = ops
        op = self.op
        self.mfma = op.startswith("v_mfma") or op.startswith("v_smfmac")
        self.valu = op.startswith("v_") and not self.mfma
        self.vmem = op.startswith("buffer_") or op.startswith("global_")
        self.ds = op.startswith("ds_")
        self.dpp = "_dpp" in op
        self.trans = op.replace("_e32", "").replace("_e64", "") in TRANS
        self.dot = op.startswith("v_dot")
        self.perm = op.startswith("v_permlane")
        self.rdlane = op.startswith("v_readlane") or op.startswith("v_readfirstlane")
        R = [regs(o) for o in ops]
        self.w = set(); self.r = set(); self.data = set(); self.ab = set(); self.c = set()
        self.states = 1
        if op == "s_nop": self.states = int(ops[0]) + 1
        if self.mfma:
            self.w = R[0]
            if op.startswith("v_smfmac"):
                self.ab = R[1] | R[2] | R[3]; self.c = R[0]
            else:
                self.ab = R[1] | R[2]; self.c = R[3]
            self.r = self.ab | self.c
        elif self.valu:
            self.w = set(R[0]); self.r = set().union(*R[1:]) if len(R) > 1 else set()
            if self.perm: self.w |= R[1]; self.r |= R[0]
            if op.startswith("v_fmac") or op.startswith("v_dot2c") or self.dpp or op.startswith("v_writelane"): self.r |= R[0]
            if op.startswith("v_cmpx"): self.w |= {"exec"}
            if "_co_" in op: self.w |= R[1]
        elif self.vmem:
            st = "store" in op or "atomic" in op
            if op.startswith("buffer_"):
                if st: self.data = R[0]; self.r = set().union(*R)
                else: self.w = R[0]; self.r = set().union(*R[1:])
            else:
                if st: self.data = R[1]; self.r = set().union(*R)
                else: self.w = R[0]; self.r = set().union(*R[1:])
            self.wide = st and ("x3" in op or "x4" in op)
        elif self.ds:
            if op.startswith("ds_read") or "_rtn" in op or "permute" in op:
                self.w = R[0]; self.r = set().union(*R[1:])
            else:
                self.r = set().union(*R)
        elif op.startswith("s_"):
            if op.startswith("s_cmp") or op.startswith("s_cbranch") or op.startswith("s_bitcmp"):
                self.r = set().union(*R) if R else set()
            elif R:
                self.w = R[0]; self.r = set().union(*R[1:]) if len(R) > 1 else set()

def need(p, c):
    n = 0
    v = lambda s: {x for x in s if x[0] == "v" and x != "vcc"}
    sg = lambda s: {x for x in s if x[0] == "s" or x == "vcc"}
    if p.valu:
        if c.valu and c.dpp and v(p.w) & c.r: n = max(n, 2)
        if c.valu and c.dpp and "exec" in p.w: n = max(n, 5)
        if c.valu and sg(p.w) & c.r: n = max(n, 4 if c.rdlane else 2)
        if c.vmem and sg(p.w) & c.r: n = max(n, 5)
        if c.rdlane and v(p.w) & c.r: n = max(n, 1)
        if p.trans and c.valu and v(p.w) & c.r: n = max(n, 1)
        if c.perm and v(p.w) & c.r: n = max(n, 2)
        if c.mfma and v(p.w) & c.r: n = max(n, 3 if p.dot else 2)
        if "exec" in p.w and (c.mfma or c.perm or c.rdlane): n = max(n, 4)
        if p.dot and (c.valu or c.vmem or c.ds) and v(p.w) & (c.r | c.w):
            same_c = c.op == p.op and not (v(p.w) & set().union(*[regs(o) for o in c.ops[1:3]]))
            if not same_c: n = max(n, 3)
    if p.mfma:
        if c.mfma:
            if p.w & c.ab: n = max(n, 8)
            if p.w & c.c and p.w != c.c: n = max(n, 6)
        elif c.valu or c.vmem or c.ds:
            if p.w & (c.r | c.w): n = max(n, 8)
            if c.valu and p.c & c.w: n = max(n, 3)
    if p.vmem and getattr(p, "wide", False) and p.data & c.w:
        n = max(n, 2 if c.valu else 1)
    return n

class Asm:
    def __init__(self):
        self.lines = []; self.hist = []; self.nops = 0
    def raw(self, t): self.lines.append(t)
    def label(self, name): self.lines.append(name + ":")
    def reset(self): self.hist = []
    def __call__(self, text):
        for t in text.strip().split("\n"):
            t = t.split(";")[0].strip()
            if not t: continue
            if t.endswith(":"):
                self.lines.append(t); continue
            c = Ins(t)
            dist = 0; req = 0
            for p in reversed(self.hist):
                req = max(req, need(p, c) - dist)
                dist += p.states
                if dist > 10: break
            if req > 0:
                nop = Ins(f"s_nop {req-1}")
                self.lines.append("    " + nop.text); self.hist.append(nop); self.nops += req
            self.lines.append("    " + t); self.hist.append(c)
            if c.op in ("s_branch", "s_endpgm"): self.hist = []
    def text(self): return "\n".join(self.lines) + "\n"
```

```python
import sys, struct
from asmlib import Asm
KN = "sequential_preLN__sliding_block_cached__dense_activation_squared_relu__decode_kernel"
HEADER = open("sequential_preLN__sliding_block_cached__dense_activation_squared_relu__decode.s.ref").read().split("; Override launch")[0]

def f32(x): return hex(struct.unpack("<I", struct.pack("<f", x))[0])

QP, OP, YB, ZB = 0x0, 0x20000, 0x60000, 0x70000
WS_BYTES = 1610612736
STAMP = 64 << 20
L_B, L_W, L_X2, L_M, L_QF, L_CF, L_Q, L_H, L_A = 0x0, 0xC00, 0x1000, 0x1080, 0x10A0, 0x10A4, 0x1100, 0x1400, 0x2000
LDS = 0x5000
OOB = "0x80000000"
LOG2E = f32(1.4426950408889634)
SCALE = f32(192 ** -0.5)
DPPF = "row_mask:0xf bank_mask:0xf"

def gen(stamps=False, round_s=True):
    a = Asm()
    tail = []
    SK, SV, SWS, SA, SX, SD = "s[4:7]", "s[8:11]", "s[12:15]", "s[16:19]", "s[20:23]", "s[24:27]"
    sW, sH, sS, sR, sJ, sCB, sBUD, sT, sT2, sM = "s28", "s29", "s30", "s31", "s32", "s33", "s34", "s35", "s3", "s36"
    sKV = ["s40", "s41", "s42", "s43"]
    sB1, sB0 = "s[44:45]", "s[46:47]"
    sO = [f"s{48+i}" for i in range(8)]
    sWt = 56
    ST0 = 68
    vK, vV, vMa, vMb, vIDX = "v1", "v2", "v3", "v4", "v5"
    Q, S, D, AO, K, V = 16, 28, 36, 48, 64, 160
    def stamp(k):
        if stamps: a(f"s_memrealtime s[{ST0+2*k}:{ST0+2*k+1}]")
    def vr(b, n): return f"v[{b}:{b+n-1}]"
    def retry(name, loop, sleep=0, body=""):
        a(f"s_cbranch_vccnz {name}_retry")
        a(f"{name}_ok:")
        t = f"{name}_retry:\n"
        if sleep: t += f"s_sleep {sleep}\n"
        t += f"s_sub_u32 {sBUD}, {sBUD}, 1\ns_cbranch_scc1 {name}_give\n{body}\ns_branch {loop}\n{name}_give:\ns_mov_b32 {sBUD}, 0\ns_branch {name}_ok\n"
        tail.append(t)
    def row_reduce(op, rs):
        for ctl in ("quad_perm:[1,0,3,2]", "quad_perm:[2,3,0,1]", "row_half_mirror", "row_mirror"):
            for r in rs: a(f"{op}_dpp v{r}, v{r}, v{r} {ctl} {DPPF}")
    def wave_reduce(op, rs):
        row_reduce(op, rs)
        for r in rs: a(f"{op}_dpp v{r}, v{r}, v{r} row_bcast:15 row_mask:0xa bank_mask:0xf")
        for r in rs: a(f"{op}_dpp v{r}, v{r}, v{r} row_bcast:31 row_mask:0xc bank_mask:0xf")
    def abuild(dst, p01, u01, p23, u23):
        a(f"v_and_b32_dpp v{dst}, v{p01}, {vMa} row_newbcast:{u01} {DPPF}")
        a(f"v_and_b32_dpp v{dst+1}, v{p01}, {vMb} row_newbcast:{u01} {DPPF}")
        a(f"v_and_b32_dpp v{dst+2}, v{p23}, {vMa} row_newbcast:{u23} {DPPF}")
        a(f"v_and_b32_dpp v{dst+3}, v{p23}, {vMb} row_newbcast:{u23} {DPPF}")
    def smf(d, ao, b): a(f"v_smfmac_f32_16x16x64_bf16 {vr(d,4)}, {vr(ao,4)}, {vr(b,8)}, {vIDX}")
    def pair_lo(dst, d):
        a(f"v_add_f32_dpp v{dst}, v{d+2}, v{d} row_ror:8 {DPPF}")
        a(f"v_add_f32_dpp v{dst+1}, v{d+3}, v{d+1} row_ror:8 {DPPF}")
    def pair_hi(dst, d):
        a(f"v_add_f32_dpp v{dst}, v{d}, v{d+2} row_ror:8 row_mask:0xf bank_mask:0xc")
        a(f"v_add_f32_dpp v{dst+1}, v{d+1}, v{d+3} row_ror:8 row_mask:0xf bank_mask:0xc")
    def tile_off(dst, hi_rows, stride, t0=14, t1=15):
        a(f"v_lshrrev_b32 v{t0}, 5, v0")
        a(f"v_mul_u32_u24 v{t0}, {hi_rows}, v{t0}")
        a(f"v_bfe_u32 v{t1}, v0, 3, 2")
        a(f"v_add_u32 v{t0}, v{t0}, v{t1}")
        a(f"v_mul_u32_u24 v{t0}, {stride}, v{t0}")
        a(f"v_and_b32 v{t1}, 7, v0")
        a(f"v_lshl_add_u32 v{dst}, v{t1}, 4, v{t0}")
    def ln_stats(vs, vq, mean, rinv):
        a(f"v_mul_f32 v{mean}, {f32(1/640)}, {vs}" if vs[0] == "v" else f"v_mov_b32 v{mean}, {f32(1/640)}\nv_mul_f32 v{mean}, {vs}, v{mean}")
        a(f"v_mul_f32 v{rinv}, {f32(1/640)}, {vq}" if vq[0] == "v" else f"v_mov_b32 v{rinv}, {f32(1/640)}\nv_mul_f32 v{rinv}, {vq}, v{rinv}")
        a(f"v_fma_f32 v{rinv}, -v{mean}, v{mean}, v{rinv}")
        a(f"v_cvt_pk_bf16_f32 v{mean}, 0, v{mean}")
        a(f"v_max_f32 v{rinv}, 0, v{rinv}")
        a(f"v_cvt_pk_bf16_f32 v{rinv}, 0, v{rinv}")
        a(f"v_add_f32 v{rinv}, {f32(1e-5)}, v{rinv}")
        a(f"v_cvt_pk_bf16_f32 v{rinv}, 0, v{rinv}")
        a(f"v_sqrt_f32 v{rinv}, v{rinv}")
        a(f"v_cvt_pk_bf16_f32 v{rinv}, 0, v{rinv}")
        a(f"v_rcp_f32 v{rinv}, v{rinv}")

    a.raw(HEADER.rstrip())
    a.raw(f"; @launch grid=(256,1,1) block=(512,1,1) lds={LDS}")
    a.raw('.amdgcn_target "amdgcn-amd-amdhsa--gfx950"')
    a.raw(".text"); a.raw(f".globl {KN}"); a.raw(".p2align 8"); a.raw(f".type {KN},@function"); a.raw(f"{KN}:")
    if stamps:
        for k in range(1, 16): a(f"s_mov_b64 s[{ST0+2*k}:{ST0+2*k+1}], 0")
    stamp(0)
    a(f"""
    s_load_dwordx2 s[4:5], s[0:1], 8
    s_load_dwordx2 s[8:9], s[0:1], 16
    s_load_dwordx2 s[12:13], s[0:1], 96
    s_load_dwordx2 s[16:17], s[0:1], 24
    s_load_dwordx2 s[20:21], s[0:1], 0
    s_load_dwordx2 s[24:25], s[0:1], 88
    s_cmp_ge_u32 s2, 256
    s_cbranch_scc1 L_end
    v_lshlrev_b32 v6, 4, v0
    v_mov_b32 v8, -1
    v_mov_b32 v9, -1
    v_mov_b32 v10, -1
    v_mov_b32 v11, -1
    v_lshrrev_b32 v7, 6, v0
    ds_write_b128 v6, v[8:11]
    v_readfirstlane_b32 {sW}, v7
    v_and_b32 v0, 63, v0
    s_mov_b32 s6, 402653184
    s_mov_b32 s7, 0x20000
    s_mov_b32 s10, 402653184
    s_mov_b32 s11, 0x20000
    s_mov_b32 s14, {WS_BYTES}
    s_mov_b32 s15, 0x20000
    s_mov_b32 s18, 7864320
    s_mov_b32 s19, 0x20000
    s_mov_b32 s22, 1280
    s_mov_b32 s23, 0x20000
    s_mov_b32 s26, 256
    s_mov_b32 s27, 0x20000
    s_and_b32 {sT}, s2, 7
    s_lshr_b32 {sT2}, s2, 6
    s_mul_i32 {sJ}, {sT}, 3
    s_add_u32 {sJ}, {sJ}, {sT2}
    s_lshl_b32 {sH}, {sT}, 2
    s_add_u32 {sH}, {sH}, {sT2}
    s_bfe_u32 {sS}, s2, 0x30003
    s_lshr_b32 {sR}, {sH}, 1
    s_cmp_eq_u32 {sT2}, 3
    s_cselect_b32 {sJ}, 99, {sJ}
    s_cmp_eq_u32 {sS}, 7
    s_cselect_b32 {sJ}, {sJ}, 99
    s_and_b32 {sCB}, {sH}, 1
    s_mul_i32 {sCB}, {sCB}, 5
    s_sub_u32 {sT}, {sS}, 2
    s_add_u32 {sCB}, {sCB}, {sT}
    s_cmp_lt_u32 {sT}, 5
    s_cselect_b32 {sCB}, {sCB}, 99
    s_mul_i32 {sKV[0]}, {sH}, 12582912
    s_mul_i32 {sT}, {sS}, 196608
    s_add_u32 {sKV[0]}, {sKV[0]}, {sT}
    s_mul_i32 {sT}, {sW}, 24576
    s_add_u32 {sKV[0]}, {sKV[0]}, {sT}
    s_add_u32 {sKV[0]}, {sKV[0]}, 11010048
    s_add_u32 {sKV[1]}, {sKV[0]}, 6144
    s_add_u32 {sKV[2]}, {sKV[0]}, 12288
    s_add_u32 {sKV[3]}, {sKV[0]}, 18432
    s_mov_b32 {sBUD}, 0x20000
    s_mov_b32 s44, 0xcccccccc
    s_mov_b32 s45, 0xcccccccc
    s_mov_b32 s46, 0xaaaaaaaa
    s_mov_b32 s47, 0xaaaaaaaa
    v_lshrrev_b32 v6, 3, v0
    v_and_b32 v7, 7, v0
    v_lshlrev_b32 v7, 4, v7
    v_mul_u32_u24 v12, 384, v6
    v_add_u32 {vK}, v12, v7
    v_and_b32 v12, 1, v6
    v_bfe_u32 v13, v0, 4, 1
    v_lshl_add_u32 v12, v13, 3, v12
    v_lshrrev_b32 v13, 5, v0
    v_lshl_add_u32 v12, v13, 1, v12
    v_mul_u32_u24 v12, 384, v12
    v_add_u32 {vV}, v12, v7
    v_bfe_u32 v12, v0, 1, 1
    v_lshlrev_b32 v12, 4, v12
    v_mov_b32 v13, 0xffff
    v_lshlrev_b32 v12, v12, v13
    v_bfe_i32 v13, v0, 3, 1
    v_and_b32 {vMb}, v12, v13
    v_not_b32 v13, v13
    v_and_b32 {vMa}, v12, v13
    v_bfe_u32 v12, v0, 2, 1
    v_and_b32 v13, 1, v0
    v_lshl_add_u32 v12, v12, 1, v13
    v_mul_u32_u24 {vIDX}, 0x5555, v12
    s_waitcnt lgkmcnt(0)
    s_barrier
    s_cmp_ge_u32 {sW}, 4
    s_cbranch_scc1 L_bpro
    """)
    a("L_item:")
    stamp(1)
    for t in range(8):
        for j in range(3):
            a(f"buffer_load_dwordx4 {vr(K+12*t+4*j,4)}, {vK}, {SK}, {sKV[t//2]} offen offset:{3072*(t%2)+128*j} nt")
    stamp(2)
    for i in range(4):
        for j in range(3):
            for T in range(2):
                a(f"buffer_load_dwordx4 {vr(V+24*i+8*j+4*T,4)}, {vV}, {SV}, {sKV[i]} offen offset:{1536*T+128*j} nt")
    stamp(3)
    a(f"""
    s_cmp_lt_u32 {sW}, 4
    s_cbranch_scc1 L_nobar
    s_barrier
    s_setprio 2
    L_nobar:
    v_and_b32 v7, 7, v0
    v_lshlrev_b32 v7, 4, v7
    v_mov_b32 v6, 0
    L_qwait:
    ds_read_b32 v8, v6 offset:{L_QF}
    ds_read_b128 {vr(Q,4)}, v7 offset:{L_Q}
    ds_read_b128 {vr(Q+4,4)}, v7 offset:{L_Q+128}
    ds_read_b128 {vr(Q+8,4)}, v7 offset:{L_Q+256}
    s_waitcnt lgkmcnt(0)
    v_cmp_eq_u32 vcc, -1, v8
    """)
    retry("Lq", "L_qwait", sleep=2)
    stamp(4)
    a("s_waitcnt vmcnt(24)")
    for t in range(8):
        a(f"v_dot2_f32_bf16 v{S+t}, v{K+12*t}, v{Q}, 0")
    for t in range(8):
        for k in range(1, 12):
            a(f"v_dot2c_f32_bf16 v{S+t}, v{K+12*t+k}, v{Q+k}")
    for t in range(4):
        a(f"v_add_f32_dpp v{S+t}, v{S+t}, v{S+t} row_half_mirror row_mask:0xf bank_mask:0x5")
    for t in range(4):
        a(f"v_add_f32_dpp v{S+t}, v{S+t+4}, v{S+t+4} row_half_mirror row_mask:0xf bank_mask:0xa")
    for t in range(4):
        a(f"v_add_f32_dpp v{S+t}, v{S+t}, v{S+t} quad_perm:[2,3,0,1] {DPPF}")
    a(f"v_cndmask_b32 v{S}, v{S}, v{S+2}, {sB1}")
    a(f"v_cndmask_b32 v{S+1}, v{S+1}, v{S+3}, {sB1}")
    for t in range(2):
        a(f"v_add_f32_dpp v{S+t}, v{S+t}, v{S+t} quad_perm:[1,0,3,2] {DPPF}")
    a(f"v_cndmask_b32 v{S}, v{S}, v{S+1}, {sB0}")
    if round_s: a(f"v_cvt_pk_bf16_f32 v{S}, 0, v{S}")
    a(f"v_mul_f32 v{S}, {SCALE}, v{S}")
    if round_s: a(f"v_cvt_pk_bf16_f32 v{S}, 0, v{S}")
    a(f"v_mov_b32 v8, v{S}")
    a(f"s_lshl_b32 {sT}, {sW}, 2")
    a(f"v_mov_b32 v6, {sT}")
    wave_reduce("v_max_f32", [8])
    a(f"v_readlane_b32 {sM}, v8, 63")
    for k in range(12): a(f"v_mov_b32 v{D+k}, 0")
    a(f"""
    v_mov_b32 v10, {sM}
    ds_write_b32 v6, v10 offset:{L_M}
    s_cmp_lt_u32 {sW}, 4
    s_cbranch_scc1 L_mready
    v_lshrrev_b32 v7, 2, v7
    s_mul_i32 {sT}, {sW}, 3072
    v_lshl_add_u32 v9, v0, 4, {sT}
    ds_read_b32 v12, v6 offset:{L_M-16}
    """)
    a(f"v_add_u32 v9, {L_A-4*3072}, v9")
    for j in range(3): a(f"ds_read_b128 {vr(D+4*j,4)}, v9 offset:{1024*j}")
    a(f"""
    L_mwait:
    ds_read_b32 v10, v7 offset:{L_M}
    s_waitcnt lgkmcnt(0)
    v_cmp_eq_u32 vcc, -1, v10
    """)
    retry("Lm", "L_mwait")
    for ctl in ("quad_perm:[1,0,3,2]", "quad_perm:[2,3,0,1]", "row_half_mirror"):
        a(f"v_max_f32_dpp v10, v10, v10 {ctl} {DPPF}")
    a(f"""
    v_sub_f32 v12, v12, v10
    v_mul_f32 v12, {LOG2E}, v12
    v_exp_f32 v12, v12
    """)
    for k in range(6):
        a(f"v_pk_mul_f32 {vr(D+2*k,2)}, {vr(D+2*k,2)}, v[12:13] op_sel_hi:[1,0]")
    a(f"""
    L_mready:
    v_sub_f32 v8, v{S}, v10
    v_mul_f32 v8, {LOG2E}, v8
    v_exp_f32 v8, v8
    s_lshl_b32 {sT}, {sH}, 3
    s_add_u32 {sT}, {sT}, {sS}
    s_lshl_b32 {sT}, {sT}, 10
    s_add_u32 {sO[0]}, {sT}, {OP}
    v_mov_b32 v11, v8
    v_mov_b32_dpp v9, v8 row_ror:8 {DPPF}
    v_cvt_pk_bf16_f32 v9, v8, v9
    """)
    wave_reduce("v_add_f32", [11])
    a(f"""
    v_lshlrev_b32 v6, 1, v6
    s_mov_b32 exec_lo, 0
    s_mov_b32 exec_hi, 0x80000000
    buffer_store_dwordx2 v[10:11], v6, {SWS}, {sO[0]} offen offset:768 sc1
    s_mov_b64 exec, -1
    """)
    for i in range(4): abuild(AO + 4 * i, 9, 2 * i, 9, 2 * i + 1)
    a(f"""
    v_and_b32 v6, 15, v0
    v_lshlrev_b32 v6, 5, v6
    v_lshrrev_b32 v7, 4, v0
    v_lshl_add_u32 v6, v7, 3, v6
    s_mul_i32 {sT}, {sW}, 768
    s_sub_u32 {sT}, {sT}, {4*768 - L_B}
    v_add_u32 v6, {sT}, v6
    v_lshlrev_b32 v7, 4, v0
    v_cmp_gt_u32 vcc, 48, v0
    v_mov_b32 v8, {OOB}
    v_cndmask_b32 v14, v8, v7, vcc
    v_cndmask_b32 v15, 0, v7, vcc
    """)
    stamp(5)
    for i in range(4):
        a(f"s_waitcnt vmcnt({19-6*i})")
        for j in range(3): smf(D + 4 * j, AO + 4 * i, V + 24 * i + 8 * j)
    stamp(6)
    a(f"""
    s_cmp_lt_u32 {sW}, 4
    s_cbranch_scc1 L_aepi
    """)
    pair_lo(8, D); pair_hi(8, D + 4); pair_lo(10, D + 8)
    a(f"""
    ds_write_b64 v6, v[8:9]
    s_mov_b32 exec_lo, 0x00ff00ff
    s_mov_b32 exec_hi, 0x00ff00ff
    ds_write_b64 v6, v[10:11] offset:512
    s_mov_b64 exec, -1
    """)
    for k in range(4): a(f"ds_read_b128 {vr(AO+4*k,4)}, v15 offset:{L_B+768*k}")
    a(f"""
    s_waitcnt lgkmcnt(0)
    v_pk_add_f32 {vr(AO,2)}, {vr(AO,2)}, {vr(AO+4,2)}
    v_pk_add_f32 {vr(AO+2,2)}, {vr(AO+2,2)}, {vr(AO+6,2)}
    v_pk_add_f32 {vr(AO+8,2)}, {vr(AO+8,2)}, {vr(AO+12,2)}
    v_pk_add_f32 {vr(AO+10,2)}, {vr(AO+10,2)}, {vr(AO+14,2)}
    v_pk_add_f32 {vr(AO,2)}, {vr(AO,2)}, {vr(AO+8,2)}
    v_pk_add_f32 {vr(AO+2,2)}, {vr(AO+2,2)}, {vr(AO+10,2)}
    v_cmp_u_f32 vcc, v{AO}, v{AO+2}
    s_cbranch_vccnz L_bdone
    buffer_store_dwordx4 {vr(AO,4)}, v14, {SWS}, {sO[0]} offen sc1
    """)
    stamp(7)
    a(f"""
    L_bdone:
    s_cmp_lg_u32 {sW}, 4
    s_cbranch_scc1 L_exit
    s_cmp_ge_u32 {sJ}, 20
    s_cbranch_scc1 L_exit
    """)
    a(f"""
    s_load_dwordx2 s[4:5], s[0:1], 72
    s_load_dwordx2 s[8:9], s[0:1], 80
    s_mov_b32 s6, 1280
    s_mov_b32 s10, 1280
    s_lshr_b32 {sT}, {sJ}, 2
    s_lshl_b32 {sT}, {sT}, 6
    s_and_b32 {sT2}, {sJ}, 3
    s_lshl_b32 {sT2}, {sT2}, 1
    s_add_u32 {sO[1]}, {sT}, {sT2}
    s_bfe_u32 {sT}, {sJ}, 0x10001
    s_lshl_b32 {sT}, {sT}, 6
    s_and_b32 {sT2}, {sJ}, 1
    s_lshl_b32 {sT2}, {sT2}, 2
    s_add_u32 {sT}, {sT}, {sT2}
    s_add_u32 {sT}, {sT}, 512
    s_cmp_lt_u32 {sJ}, 16
    s_cselect_b32 {sO[1]}, {sO[1]}, {sT}
    s_cselect_b32 {sT}, 256, 2
    v_bfe_u32 v6, v0, 3, 1
    v_mul_u32_u24 v6, {sT}, v6
    v_and_b32 v7, 7, v0
    v_lshl_add_u32 v6, v7, 3, v6
    v_lshrrev_b32 v7, 5, v0
    v_add3_u32 v6, v6, v7, {sO[1]}
    v_lshlrev_b32 v7, 2, v6
    v_lshlrev_b32 v6, 1, v6
    s_waitcnt lgkmcnt(0)
    buffer_load_ushort v9, v6, {SK}, 0 offen
    v_bfe_u32 v8, v0, 4, 1
    v_lshlrev_b32 v8, 31, v8
    v_or_b32 v6, v6, v8
    v_lshrrev_b32 v8, 4, v0
    v_mul_u32_u24 v8, {6*2560}, v8
    v_and_b32 v10, 15, v0
    v_lshl_add_u32 v8, v10, 3, v8
    s_lshl_b32 {sT}, {sJ}, 7
    s_add_u32 {sO[1]}, {sT}, {ZB}
    s_add_u32 {sO[2]}, {sT}, {ZB+5120}
    s_add_u32 {sO[3]}, {sT}, {ZB+10240}
    L_hwait:
    ds_read_b32 v10, v7 offset:{L_H}
    s_waitcnt lgkmcnt(0)
    v_cmp_eq_u32 vcc, -1, v10
    """)
    retry("Lh", "L_hwait", sleep=1)
    a("s_waitcnt vmcnt(0)")
    a("v_lshlrev_b32 v9, 16, v9")
    stamp(8)
    a("L_zpoll:")
    for k in range(6):
        a(f"buffer_load_dwordx2 {vr(AO+2*k,2)}, v8, {SWS}, {sO[1+k//2]} offen offset:{2560*(k%2)} sc1")
    a(f"""
    s_waitcnt vmcnt(0)
    v_pk_add_f32 {vr(AO,2)}, {vr(AO,2)}, {vr(AO+2,2)}
    v_pk_add_f32 {vr(AO+4,2)}, {vr(AO+4,2)}, {vr(AO+6,2)}
    v_pk_add_f32 {vr(AO+8,2)}, {vr(AO+8,2)}, {vr(AO+10,2)}
    v_pk_add_f32 {vr(AO,2)}, {vr(AO,2)}, {vr(AO+4,2)}
    v_pk_add_f32 {vr(AO,2)}, {vr(AO,2)}, {vr(AO+8,2)}
    v_cmp_u_f32 vcc, v{AO}, v{AO+1}
    """)
    retry("Lz", "L_zpoll")
    stamp(9)
    a(f"""
    v_permlane32_swap_b32 v{AO}, v{AO+1}
    v_add_f32 v{AO}, v{AO}, v{AO+1}
    v_mov_b32 v{AO+1}, v{AO}
    v_permlane16_swap_b32 v{AO}, v{AO+1}
    v_add_f32 v{AO}, v{AO}, v{AO+1}
    v_cvt_pk_bf16_f32 v{AO}, 0, v{AO}
    v_add_f32 v{AO}, v{AO}, v9
    v_cvt_pk_bf16_f32 v{AO}, 0, v{AO}
    v_add_f32 v{AO}, v{AO}, v10
    v_cvt_pk_bf16_f32 v{AO}, v{AO}, v{AO}
    buffer_store_short v{AO}, v6, {SV}, 0 offen
    """)
    stamp(10)
    a("s_branch L_exit")
    a("L_aepi:")
    a(f"""
    s_mul_i32 {sT}, {sW}, 3072
    v_add_u32 v7, {sT}, v7
    s_nop 7
    """)
    for j in range(3): a(f"ds_write_b128 v7, {vr(D+4*j,4)} offset:{L_A+1024*j}")
    a(f"""
    s_min_u32 {sT}, {sJ}, {sCB}
    s_cmp_eq_u32 {sT}, 99
    s_cbranch_scc1 L_exit
    v_and_b32 v6, 31, v0
    v_lshlrev_b32 v6, 3, v6
    L_cwait:
    buffer_load_dword v8, v6, {SD}, 0 offen sc1
    s_waitcnt vmcnt(0)
    v_cmp_ne_u32 vcc, 8, v8
    """)
    retry("Lc", "L_cwait", sleep=8)
    a(f"""
    v_and_b32 v6, 7, v0
    v_lshlrev_b32 v6, 5, v6
    v_lshrrev_b32 v7, 4, v0
    v_lshl_add_u32 v6, v7, 3, v6
    s_lshl_b32 {sT}, {sW}, 8
    s_add_u32 {sT}, {sT}, {L_W}
    s_sub_u32 {sT2}, 0x1e00, {sT}
    v_bfe_u32 v7, v0, 3, 1
    v_mul_u32_u24 v7, {sT2}, v7
    v_add3_u32 v13, v6, v7, {sT}
    """)
    for k in range(12): a(f"v_mov_b32 v{D+k}, 0")
    a(f"""
    s_cmp_lt_u32 {sJ}, 24
    s_cbranch_scc1 L_ffn
    """)
    WO, O8 = 64, 112
    a(f"""
    s_load_dwordx2 s[16:17], s[0:1], 32
    s_lshr_b32 {sT}, {sW}, 1
    s_lshl_b32 {sT2}, {sR}, 1
    s_add_u32 {sT}, {sT}, {sT2}
    s_lshl_b32 {sO[0]}, {sT}, 13
    s_add_u32 {sO[0]}, {sO[0]}, {OP}
    s_add_u32 {sO[1]}, {sO[0]}, 4096
    s_mul_i32 {sO[2]}, {sR}, 2560
    s_lshl_b32 {sT2}, {sCB}, 8
    s_add_u32 {sO[2]}, {sO[2]}, {sT2}
    s_add_u32 {sO[2]}, {sO[2]}, {YB}
    s_mul_i32 {sO[3]}, {sR}, {384*1280}
    s_mul_i32 {sT2}, {sW}, {96*1280}
    s_add_u32 {sO[3]}, {sO[3]}, {sT2}
    s_lshl_b32 {sT2}, {sCB}, 7
    s_add_u32 {sO[3]}, {sO[3]}, {sT2}
    s_add_u32 {sO[4]}, {sO[3]}, 61440
    """)
    tile_off(6, 24, 1280)
    a(f"""
    v_lshrrev_b32 v7, 3, v0
    v_lshlrev_b32 v7, 10, v7
    v_and_b32 v8, 7, v0
    v_lshl_add_u32 v7, v8, 3, v7
    v_lshrrev_b32 v8, 4, v0
    v_mul_u32_u24 v8, 96, v8
    v_and_b32 v9, 15, v0
    v_lshl_add_u32 v8, v9, 3, v8
    s_and_b32 {sT}, {sW}, 1
    s_mul_i32 {sT}, {sT}, 384
    v_add_u32 v8, {sT}, v8
    v_mov_b32 v10, {OOB}
    v_cmp_gt_u32 vcc, 12, v9
    v_cndmask_b32 v8, v10, v8, vcc
    v_lshlrev_b32 v12, 4, v9
    v_cmp_gt_u32 vcc, 16, v0
    v_cndmask_b32 v9, v10, v12, vcc
    s_waitcnt lgkmcnt(0)
    s_barrier
    """)
    stamp(7)
    for i in range(6):
        for T in range(2):
            a(f"buffer_load_dwordx4 {vr(WO+8*i+4*T,4)}, v6, {SA}, {sO[3+T]} offen nt")
            if i < 5: a(f"s_add_u32 {sO[3+T]}, {sO[3+T]}, 5120")
    stamp(8)
    oloads = "\n".join(f"buffer_load_dwordx2 {vr(O8+2*k,2)}, v8, {SWS}, {sO[k//4]} offen offset:{1024*(k%4)} sc1" for k in range(8))
    a("L_stpoll:")
    a(f"buffer_load_dwordx2 v[10:11], v7, {SWS}, {sO[0]} offen offset:768 sc1")
    a(oloads)
    a(f"""
    s_waitcnt vmcnt(8)
    v_cmp_u_f32 vcc, v10, v11
    """)
    retry("Lst", "L_stpoll", sleep=2)
    stamp(9)
    a("v_mov_b32 v14, v10")
    wave_reduce("v_max_f32", [14])
    a(f"""
    v_readlane_b32 {sM}, v14, 63
    v_subrev_f32 v10, {sM}, v10
    v_mul_f32 v10, {LOG2E}, v10
    v_exp_f32 v10, v10
    v_mul_f32 v11, v10, v11
    """)
    wave_reduce("v_add_f32", [11])
    a(f"""
    v_readlane_b32 {sM}, v11, 63
    v_rcp_f32 v11, {sM}
    v_mul_f32 v10, v10, v11
    """)
    for k in range(8): a(f"v_readlane_b32 s{sWt+k}, v10, {8*k+4}")
    a("L_opoll:")
    a("s_waitcnt vmcnt(0)")
    for k in range(8):
        sel = "op_sel_hi:[1,0,1]" if k % 2 == 0 else "op_sel:[0,1,0] op_sel_hi:[1,1,1]"
        sp = f"s[{sWt+k//2*2}:{sWt+k//2*2+1}]"
        if k == 0: a(f"v_pk_mul_f32 v[10:11], {vr(O8,2)}, {sp} op_sel_hi:[1,0]")
        else: a(f"v_pk_fma_f32 v[10:11], {vr(O8+2*k,2)}, {sp}, v[10:11] {sel}")
    a("v_cmp_u_f32 vcc, v10, v11")
    a("v_cvt_pk_bf16_f32 v10, v10, v11")
    retry("Lo", "L_opoll", body=oloads)
    stamp(10)
    abuild(AO, 10, 0, 10, 1)
    for i in range(6):
        if i < 5: abuild(AO + 4 * ((i + 1) % 2), 10, 2 * i + 2, 10, 2 * i + 3)
        smf(D, AO + 4 * (i % 2), WO + 8 * i)
    pair_lo(10, D)
    a("ds_write_b64 v13, v[10:11]")
    for k in range(4): a(f"ds_read_b128 {vr(AO+4*k,4)}, v12 offset:{L_W+256*k}")
    a(f"""
    s_waitcnt lgkmcnt(0)
    v_pk_add_f32 {vr(AO,2)}, {vr(AO,2)}, {vr(AO+4,2)}
    v_pk_add_f32 {vr(AO+2,2)}, {vr(AO+2,2)}, {vr(AO+6,2)}
    v_pk_add_f32 {vr(AO+8,2)}, {vr(AO+8,2)}, {vr(AO+12,2)}
    v_pk_add_f32 {vr(AO+10,2)}, {vr(AO+10,2)}, {vr(AO+14,2)}
    v_pk_add_f32 {vr(AO,2)}, {vr(AO,2)}, {vr(AO+8,2)}
    v_pk_add_f32 {vr(AO+2,2)}, {vr(AO+2,2)}, {vr(AO+10,2)}
    v_cmp_u_f32 vcc, v{AO}, v{AO+2}
    s_cbranch_vccnz L_exit
    buffer_store_dwordx4 {vr(AO,4)}, v9, {SWS}, {sO[2]} offen sc1
    """)
    stamp(11)
    a("s_branch L_exit")
    W1, W2 = 64, 144
    YR = [16, 20, 24, 28, 32, 40, 44, 48, 52, 56, 60, 240, 244, 248, 252]
    a("L_ffn:")
    a(f"""
    s_load_dwordx2 s[4:5], s[0:1], 48
    s_load_dwordx2 s[8:9], s[0:1], 64
    s_load_dwordx2 s[16:17], s[0:1], 56
    s_mov_b32 s6, 1966080
    s_mov_b32 s10, 1966080
    s_mov_b32 s18, 3072
    """)
    tile_off(1, 40, 3072)
    tile_off(2, 16, 1280)
    a(f"""
    s_mul_i32 {sKV[0]}, {sW}, {160*3072}
    s_lshl_b32 {sT}, {sJ}, 7
    s_add_u32 {sKV[0]}, {sKV[0]}, {sT}
    s_add_u32 {sKV[1]}, {sKV[0]}, 245760
    s_mul_i32 {sKV[2]}, {sJ}, {64*1280}
    s_lshl_b32 {sT2}, {sW}, 7
    s_add_u32 {sKV[2]}, {sKV[2]}, {sT2}
    s_add_u32 {sKV[3]}, {sKV[2]}, 40960
    v_lshrrev_b32 v6, 4, v0
    v_and_b32 v7, 15, v0
    v_mul_u32_u24 v8, 10, v6
    s_mul_i32 {sT2}, {sW}, 40
    v_add3_u32 v8, v8, v7, {sT2}
    v_lshlrev_b32 v9, 3, v8
    v_lshlrev_b32 v8, 4, v8
    v_mov_b32 v10, {OOB}
    v_mov_b32 v11, {0x1E00 - L_H}
    v_cmp_gt_u32 vcc, 10, v7
    v_cndmask_b32 v9, v10, v9, vcc
    v_cndmask_b32 v11, v11, v8, vcc
    v_cndmask_b32 v8, v10, v8, vcc
    v_and_b32 v12, 7, v0
    v_lshl_add_u32 v12, v6, 3, v12
    v_lshlrev_b32 v14, 2, v12
    v_lshlrev_b32 v12, 3, v12
    s_waitcnt lgkmcnt(0)
    buffer_load_dwordx2 v[44:45], v9, {SX}, 0 offen
    buffer_load_dword v46, v14, {SA}, {sT} offen
    s_waitcnt vmcnt(0)
    """)
    a(f"""
    v_mov_b32 v9, v44
    v_mov_b32 v10, v45
    v_mov_b32 v14, v46
    s_lshl_b32 {sT}, {sW}, 5
    v_lshl_add_u32 v6, v6, 3, {sT}
    v_lshlrev_b32 v7, 3, v7
    s_waitcnt lgkmcnt(0)
    s_barrier
    """)
    stamp(7)
    for i in range(10):
        for T in range(2):
            a(f"buffer_load_dwordx4 {vr(W1+8*i+4*T,4)}, v1, {SK}, {sKV[T]} offen nt")
            if i < 9: a(f"s_add_u32 {sKV[T]}, {sKV[T]}, 12288")
    for i in range(4):
        for T in range(2):
            for k in range(2):
                a(f"buffer_load_dwordx4 {vr(W2+32*k+8*i+4*T,4)}, v2, {SV}, {sKV[2+T]} offen offset:{512*k} nt")
            a(f"s_add_u32 {sKV[2+T]}, {sKV[2+T]}, 5120")
    a(f"""
    s_cmp_ge_u32 {sW}, 2
    s_cbranch_scc1 L_now2
    """)
    for i in reversed(range(4)):
        for T in range(2):
            a(f"s_sub_u32 {sKV[2+T]}, {sKV[2+T]}, 5120")
            a(f"buffer_load_dwordx4 {vr(W2+64+8*i+4*T,4)}, v2, {SV}, {sKV[2+T]} offen offset:1024 nt")
    a("L_now2:")
    for k in range(8): a(f"s_mov_b32 {sO[k]}, {YB+5120*k}")
    a(f"""
    s_mul_i32 {sKV[0]}, {sJ}, 2560
    s_add_u32 {sKV[0]}, {sKV[0]}, {ZB}
    s_lshl_b32 {sT}, {sW}, 9
    v_lshl_add_u32 v1, v0, 3, {sT}
    s_lshl_b32 {sT}, {sW}, 8
    s_cmp_lt_u32 {sW}, 2
    s_cselect_b32 {sT}, {sT}, 0x70000000
    v_add_u32 v2, {sT}, v12
    v_bfe_u32 v15, v0, 3, 1
    v_lshlrev_b32 v15, 31, v15
    v_or_b32 v2, v2, v15
    v_mov_b32 v15, 0x3f803f80
    s_waitcnt vmcnt(0)
    """)
    stamp(8)
    YR16 = YR + [36]
    a("L_ypoll:")
    for r in range(16):
        a(f"buffer_load_dwordx4 {vr(YR16[r],4)}, v8, {SWS}, {sO[r//2]} offen offset:{2560*(r%2)} sc1")
    for r in range(1, 16):
        a(f"s_waitcnt vmcnt({15-r})")
        a(f"v_pk_add_f32 v[16:17], v[16:17], {vr(YR16[r],2)}")
        a(f"v_pk_add_f32 v[18:19], v[18:19], {vr(YR16[r]+2,2)}")
    a("v_pk_add_f32 v[20:21], v[16:17], v[18:19]")
    for k in range(4): a(f"v_cvt_pk_bf16_f32 v{16+k}, 0, v{16+k}")
    a("v_cmp_u_f32 vcc, v20, v21")
    a(f"""
    v_lshlrev_b32 v24, 16, v9
    v_and_b32 v25, 0xffff0000, v9
    v_lshlrev_b32 v26, 16, v10
    v_and_b32 v27, 0xffff0000, v10
    """)
    retry("Ly", "L_ypoll")
    stamp(9)
    a(f"""
    v_pk_add_f32 v[16:17], v[16:17], v[24:25]
    v_pk_add_f32 v[18:19], v[18:19], v[26:27]
    v_cvt_pk_bf16_f32 v20, v16, v17
    v_cvt_pk_bf16_f32 v21, v18, v19
    v_dot2_f32_bf16 v22, v20, v15, 0
    v_dot2_f32_bf16 v23, v20, v20, 0
    v_dot2_f32_bf16 v22, v21, v15, v22
    v_dot2_f32_bf16 v23, v21, v21, v23
    v_lshlrev_b32 v16, 16, v20
    v_and_b32 v17, 0xffff0000, v20
    v_lshlrev_b32 v18, 16, v21
    v_and_b32 v19, 0xffff0000, v21
    """)
    row_reduce("v_add_f32", [22, 23])
    a(f"""
    s_mov_b32 exec_lo, 0x00010001
    s_mov_b32 exec_hi, 0x00010001
    ds_write_b64 v6, v[22:23] offset:{L_X2}
    s_mov_b64 exec, -1
    L_x2wait:
    ds_read_b64 v[22:23], v7 offset:{L_X2}
    ds_write_b128 v11, v[16:19] offset:{L_H}
    """)
    for k in range(12): a(f"v_mov_b32 v{D+k}, 0")
    a(f"""
    s_waitcnt lgkmcnt(0)
    v_cmp_eq_u32 vcc, -1, v23
    """)
    retry("Lx2", "L_x2wait")
    stamp(10)
    row_reduce("v_add_f32", [22, 23])
    ln_stats("v22", "v23", 22, 24)
    a(f"""
    v_pk_add_f32 v[16:17], v[16:17], v[22:23] op_sel_hi:[1,0] neg_lo:[0,1] neg_hi:[0,1]
    v_pk_add_f32 v[18:19], v[18:19], v[22:23] op_sel_hi:[1,0] neg_lo:[0,1] neg_hi:[0,1]
    """)
    for k in range(4): a(f"v_cvt_pk_bf16_f32 v{16+k}, 0, v{16+k}")
    a(f"""
    v_pk_mul_f32 v[16:17], v[16:17], v[24:25] op_sel_hi:[1,0]
    v_pk_mul_f32 v[18:19], v[18:19], v[24:25] op_sel_hi:[1,0]
    v_cvt_pk_bf16_f32 v20, v16, v17
    v_cvt_pk_bf16_f32 v21, v18, v19
    """)
    abuild(AO, 20, 0, 21, 0)
    for i in range(10):
        if i < 9: abuild(AO + 4 * ((i + 1) % 2), 20, i + 1, 21, i + 1)
        smf(D, AO + 4 * (i % 2), W1 + 8 * i)
    a("v_lshlrev_b32 v24, 16, v14")
    a("v_and_b32 v25, 0xffff0000, v14")
    pair_lo(16, D)
    a("ds_write_b64 v13, v[16:17]")
    stamp(11)
    a("L_x3wait:")
    for k in range(4): a(f"ds_read_b64 {vr(16+2*k,2)}, v12 offset:{L_W+256*k}")
    for k in range(4): a(f"v_mov_b32 v{D+k}, 0")
    a(f"""
    s_waitcnt lgkmcnt(0)
    v_pk_add_f32 v[16:17], v[16:17], v[18:19]
    v_pk_add_f32 v[20:21], v[20:21], v[22:23]
    v_pk_add_f32 v[16:17], v[16:17], v[20:21]
    v_cmp_u_f32 vcc, v16, v17
    v_cvt_pk_bf16_f32 v16, 0, v16
    v_cvt_pk_bf16_f32 v17, 0, v17
    """)
    retry("Lx3", "L_x3wait")
    stamp(12)
    a(f"""
    v_pk_add_f32 v[16:17], v[16:17], v[24:25]
    v_cvt_pk_bf16_f32 v16, 0, v16
    v_cvt_pk_bf16_f32 v17, 0, v17
    v_max_f32 v16, 0, v16
    v_max_f32 v17, 0, v17
    v_pk_mul_f32 v[16:17], v[16:17], v[16:17]
    v_cvt_pk_bf16_f32 v20, v16, v17
    """)
    abuild(AO, 20, 0, 20, 1)
    for i in range(4):
        if i < 3: abuild(AO + 4 * ((i + 1) % 2), 20, 2 * i + 2, 20, 2 * i + 3)
        for k in range(3): smf(D + 4 * k, AO + 4 * (i % 2), W2 + 32 * k + 8 * i)
    pair_lo(16, D); pair_hi(16, D + 4); pair_lo(18, D + 8)
    a(f"""
    buffer_store_dwordx2 v[16:17], v1, {SWS}, {sKV[0]} offen sc1
    buffer_store_dwordx2 v[18:19], v2, {SWS}, {sKV[0]} offen offset:2048 sc1
    """)
    stamp(13)
    a("s_branch L_exit")
    a("L_bpro:")
    a(f"""
    s_cmp_eq_u32 {sW}, 7
    s_cbranch_scc1 L_w7
    s_cmp_ge_u32 {sS}, 5
    s_cbranch_scc1 L_item
    s_setprio 3
    v_lshlrev_b32 v6, 2, v0
    s_lshl_b32 {sT}, {sS}, 8
    buffer_load_dword v21, v6, {SX}, {sT} offen
    """)
    for k in range(5): a(f"buffer_load_dword v{16+k}, v6, {SX}, 0 offen offset:{256*k}")
    tile_off(7, 32, 12288)
    a(f"""
    s_mul_i32 {sO[0]}, {sS}, {128*12288}
    s_mul_i32 {sT}, {sH}, 384
    s_add_u32 {sO[0]}, {sO[0]}, {sT}
    s_lshl_b32 {sT}, {sW}, 7
    s_add_u32 {sO[0]}, {sO[0]}, {sT}
    s_sub_u32 {sO[0]}, {sO[0]}, 512
    s_add_u32 {sO[1]}, {sO[0]}, 786432
    """)
    for i in range(8):
        for T in range(2):
            a(f"buffer_load_dwordx4 {vr(V+8*i+4*T,4)}, v7, {SA}, {sO[T]} offen nt")
            if i < 7: a(f"s_add_u32 {sO[T]}, {sO[T]}, 49152")
    stamp(11)
    a(f"""
    v_mov_b32 v15, 0x3f803f80
    v_mov_b32 v22, 0
    v_mov_b32 v23, 0
    s_waitcnt vmcnt(16)
    """)
    for k in range(5):
        a(f"v_dot2c_f32_bf16 v22, v{16+k}, v15")
        a(f"v_dot2c_f32_bf16 v23, v{16+k}, v{16+k}")
    for k in range(4): a(f"v_mov_b32 v{D+k}, 0")
    wave_reduce("v_add_f32", [22, 23])
    a(f"v_readlane_b32 {sT}, v22, 63")
    a(f"v_readlane_b32 {sT2}, v23, 63")
    a("v_lshlrev_b32 v16, 16, v21")
    a("v_and_b32 v17, 0xffff0000, v21")
    ln_stats(sT, sT2, 22, 24)
    a(f"""
    v_pk_add_f32 v[16:17], v[16:17], v[22:23] op_sel_hi:[1,0] neg_lo:[0,1] neg_hi:[0,1]
    v_cvt_pk_bf16_f32 v16, 0, v16
    v_cvt_pk_bf16_f32 v17, 0, v17
    v_pk_mul_f32 v[16:17], v[16:17], v[24:25] op_sel_hi:[1,0]
    v_cvt_pk_bf16_f32 v20, v16, v17
    """)
    abuild(AO, 20, 0, 20, 1)
    for i in range(8):
        if i < 7: abuild(AO + 4 * ((i + 1) % 2), 20, 2 * i + 2, 20, 2 * i + 3)
        a(f"s_waitcnt vmcnt({14-2*i})")
        smf(D, AO + 4 * (i % 2), V + 8 * i)
    a(f"""
    v_and_b32 v6, 7, v0
    v_lshlrev_b32 v6, 5, v6
    v_lshrrev_b32 v7, 4, v0
    v_lshl_add_u32 v6, v7, 3, v6
    v_bfe_u32 v7, v0, 3, 1
    v_lshlrev_b32 v7, 31, v7
    v_or_b32 v6, v6, v7
    s_lshl_b32 {sT}, {sH}, 12
    s_mul_i32 {sT2}, {sS}, 768
    s_add_u32 {sT}, {sT}, {sT2}
    s_lshl_b32 {sT2}, {sW}, 8
    s_add_u32 {sT}, {sT}, {sT2}
    s_sub_u32 {sT}, {sT}, {1024 - QP}
    """)
    pair_lo(16, D)
    a(f"""
    v_mov_b32 v7, 0
    L_clrwait:
    ds_read_b32 v8, v7 offset:{L_CF}
    s_waitcnt lgkmcnt(0)
    v_cmp_eq_u32 vcc, -1, v8
    """)
    retry("Lcf", "L_clrwait", sleep=1)
    a(f"buffer_store_dwordx2 v[16:17], v6, {SWS}, {sT} offen sc1")
    stamp(12)
    a("s_setprio 0")
    a("s_branch L_item")
    a("L_w7:")
    a(f"""
    s_setprio 3
    v_lshlrev_b32 v6, 4, v0
    s_lshl_b32 {sT}, {sH}, 3
    s_add_u32 {sT}, {sT}, {sS}
    s_lshl_b32 {sT}, {sT}, 10
    s_add_u32 {sT}, {sT}, {OP}
    buffer_store_dwordx4 v[8:11], v6, {SWS}, {sT} offen sc1
    s_lshl_b32 {sO[0]}, {sH}, 12
    s_add_u32 {sO[0]}, {sO[0]}, {QP}
    s_cmp_ge_u32 {sS}, 5
    s_cbranch_scc1 L_c1
    s_mul_i32 {sT}, {sS}, 768
    s_add_u32 {sT}, {sT}, {sO[0]}
    s_bfm_b64 exec, 48, 0
    buffer_store_dwordx4 v[8:11], v6, {SWS}, {sT} offen sc1
    L_c1:
    s_cmp_ge_u32 {sCB}, 10
    s_cbranch_scc1 L_c2
    s_mul_i32 {sT}, {sR}, 2560
    s_lshl_b32 {sT2}, {sCB}, 8
    s_add_u32 {sT}, {sT}, {sT2}
    s_add_u32 {sT}, {sT}, {YB}
    s_bfm_b64 exec, 16, 0
    buffer_store_dwordx4 v[8:11], v6, {SWS}, {sT} offen sc1
    L_c2:
    s_cmp_ge_u32 {sJ}, 24
    s_cbranch_scc1 L_c3
    s_mul_i32 {sT}, {sJ}, 2560
    s_add_u32 {sT}, {sT}, {ZB}
    s_mov_b64 exec, -1
    buffer_store_dwordx4 v[8:11], v6, {SWS}, {sT} offen sc1
    buffer_store_dwordx4 v[8:11], v6, {SWS}, {sT} offen offset:1024 sc1
    s_bfm_b64 exec, 32, 0
    buffer_store_dwordx4 v[8:11], v6, {SWS}, {sT} offen offset:2048 sc1
    L_c3:
    s_mov_b64 exec, -1
    v_mov_b32 v7, 0
    v_mov_b32 v12, 1
    v_mov_b32 v13, {OOB}
    v_cmp_gt_u32 vcc, 48, v0
    v_cndmask_b32 v6, v13, v6, vcc
    v_lshlrev_b32 v13, 3, v0
    s_lshl_b32 {sT}, {sH}, 3
    s_mov_b64 exec, 1
    s_waitcnt vmcnt(0)
    ds_write_b32 v7, v7 offset:{L_CF}
    buffer_atomic_add v12, v7, {SD}, {sT} offen sc1
    """)
    stamp(11)
    a(f"""
    L_dwait:
    buffer_load_dword v12, v7, {SD}, {sT} offen sc1
    s_waitcnt vmcnt(0)
    v_cmp_ne_u32 vcc, 8, v12
    """)
    retry("Ld", "L_dwait", sleep=4)
    a("s_mov_b64 exec, -1")
    stamp(12)
    a("L_qpoll:")
    for k in range(5): a(f"buffer_load_dwordx4 {vr(16+4*k,4)}, v6, {SWS}, {sO[0]} offen offset:{768*k} sc1")
    a("s_waitcnt vmcnt(0)")
    for k in range(1, 5):
        a(f"v_pk_add_f32 v[16:17], v[16:17], {vr(16+4*k,2)}")
        a(f"v_pk_add_f32 v[18:19], v[18:19], {vr(18+4*k,2)}")
    a("v_pk_add_f32 v[20:21], v[16:17], v[18:19]")
    a("v_cmp_u_f32 vcc, v20, v21")
    retry("Lqp", "L_qpoll", sleep=4)
    a(f"""
    v_cvt_pk_bf16_f32 v16, v16, v17
    v_cvt_pk_bf16_f32 v17, v18, v19
    v_mov_b32 v7, 0
    ds_write_b64 v13, v[16:17] offset:{L_Q}
    ds_write_b32 v7, v7 offset:{L_QF}
    """)
    stamp(13)
    a("s_setprio 0")
    a("s_branch L_item")
    for t in tail:
        a(t)
    a("L_exit:")
    if stamps:
        a(f"""
        s_mov_b64 exec, -1
        s_memrealtime s[{ST0+28}:{ST0+29}]
        s_getreg_b32 s{ST0+30}, hwreg(HW_REG_XCC_ID)
        s_mov_b32 s{ST0+31}, {sBUD}
        s_lshl_b32 {sT}, s2, 3
        s_add_u32 {sT}, {sT}, {sW}
        s_lshl_b32 {sT}, {sT}, 7
        s_add_u32 {sT}, {sT}, {STAMP}
        s_waitcnt lgkmcnt(0) vmcnt(0)
        s_nop 7
        """)
        for k in range(32): a(f"v_mov_b32 v{16+k}, s{ST0+k}")
        a("v_mov_b32 v6, 0")
        a("s_mov_b64 exec, 1")
        for k in range(8): a(f"buffer_store_dwordx4 {vr(16+4*k,4)}, v6, {SWS}, {sT} offen offset:{16*k}")
    a("L_end:")
    a("s_endpgm")
    a.raw('.section .rodata,"a"'); a.raw(".p2align 6"); a.raw(f".amdhsa_kernel {KN}")
    a.raw("  .amdhsa_next_free_vgpr 256"); a.raw("  .amdhsa_next_free_sgpr 102"); a.raw("  .amdhsa_accum_offset 256")
    a.raw("  .amdhsa_group_segment_fixed_size 0"); a.raw("  .amdhsa_kernarg_size 104"); a.raw("  .amdhsa_user_sgpr_count 2")
    a.raw("  .amdhsa_user_sgpr_kernarg_segment_ptr 1"); a.raw("  .amdhsa_system_sgpr_workgroup_id_x 1"); a.raw(".end_amdhsa_kernel")
    return a.text()

if __name__ == "__main__":
    open("k1.s", "w").write(gen())
    open("k1_st.s", "w").write(gen(stamps=True))
    open("k1_nr.s", "w").write(gen(round_s=False))
```
